```python
import torch

def _softmax(x, axis=-1):
    return torch.softmax(x, dim=axis)
def _gelu(x):
    return torch.nn.functional.gelu(x, approximate="tanh")
def _silu(x):
    return torch.nn.functional.silu(x)
def _sigmoid(x):
    return torch.sigmoid(x)
def _layernorm(x, axis=-1, eps=1e-5):
    m = x.mean(dim=axis, keepdim=True)
    v = x.var(dim=axis, keepdim=True, unbiased=False)
    return (x - m) / torch.sqrt(v + eps)
def _scatter_add(tgt, idx, src, axis=0):
    return tgt.clone().index_add_(axis, idx, src)
def _segment_sum(src, seg, n):
    out = torch.zeros((n,) + src.shape[1:], dtype=src.dtype)
    return out.index_add_(0, seg, src)
def _pad(x, pw):
    flat = tuple(v for pair in reversed(pw) for v in pair)
    return torch.nn.functional.pad(x, flat)

kernel_name = 'standalone__modern_conv_block_convnext__vision'

def setup_inputs():

    _w = (lambda a: (lambda t: t.to(torch.bfloat16) if t.is_floating_point() else t)(torch.as_tensor(a)))
    H = W = 224
    C = 96
    K = 7
    return {
        "x": _w((lambda *s: torch.randn(*s, dtype=torch.bfloat16) * 0.05)(1, H, W, C)),
        "dw": _w((lambda *s: torch.randn(*s, dtype=torch.bfloat16) * 0.05)(K, K, C)),
        "w1": _w((lambda *s: torch.randn(*s, dtype=torch.bfloat16) * 0.05)(C, 4 * C)),
        "b1": _w((lambda *s: torch.randn(*s, dtype=torch.bfloat16) * 0.2)(4 * C)),
        "w2": _w((lambda *s: torch.randn(*s, dtype=torch.bfloat16) * 0.05)(4 * C, C)),
        "b2": _w((lambda *s: torch.randn(*s, dtype=torch.bfloat16) * 0.4)(C)),
        "gamma": _w((lambda *s: torch.randn(*s, dtype=torch.bfloat16) * 0.05)(C)),
    }

def reference(x, dw, w1, b1, w2, b2, gamma):
    B, H, W, C = x.shape
    K = dw.shape[0]
    pad = K // 2
    xp = _pad(x, ((0,0),(pad,pad),(pad,pad),(0,0)))
    out = torch.zeros_like(x)
    for i in range(K):
        for j in range(K):
            out = out + xp[:, i:i+H, j:j+W, :] * dw[i, j][None, None, None, :]
    h = _layernorm(out, axis=-1)
    h = torch.einsum('bhwc,ce->bhwe', h, w1) + b1
    h = _gelu(h)
    h = torch.einsum('bhwe,ec->bhwc', h, w2) + b2
    return x + gamma[None, None, None, :] * h
```

```python
import re

TRANS = ("v_exp_f32", "v_rcp_f32", "v_rsq_f32", "v_log_f32", "v_sqrt_f32")


def regs_of(tok):
    tok = tok.strip().lstrip("-")
    tok = re.sub(r"^\|(.*)\|$", r"\1", tok)
    m = re.fullmatch(r"([vsa])(\d+)", tok)
    if m:
        return [tok]
    m = re.fullmatch(r"([vsa])\[(\d+):(\d+)\]", tok)
    if m:
        return [f"{m.group(1)}{i}" for i in range(int(m.group(2)), int(m.group(3)) + 1)]
    if tok == "vcc":
        return ["vcc"]
    if tok in ("exec", "m0"):
        return [tok]
    return []


class Ins:
    def __init__(self, text):
        self.text = text
        body = text.split(";")[0].strip()
        parts = body.split(None, 1)
        self.op = parts[0]
        rest = parts[1] if len(parts) > 1 else ""
        toks = [t.strip() for t in re.split(r",(?![^\[]*\])", rest)] if rest else []
        if toks:
            last = toks[-1].split()
            self.mods = last[1:]
            toks[-1] = last[0] if last else ""
        else:
            self.mods = []
        self.toks = toks
        op = self.op
        R = [regs_of(t) for t in toks]
        self.mfma = op.startswith("v_mfma") or op.startswith("v_smfmac")
        self.valu = op.startswith("v_") and not self.mfma
        self.trans = op.replace("_e32", "").replace("_e64", "") in TRANS
        self.ds = op.startswith("ds_")
        self.vmem = op.startswith("buffer_") or op.startswith("global_")
        self.dst, self.src = [], []
        self.srcc = []
        if self.mfma:
            self.passes = 8 if "32x32" in op else 4
            self.dst = R[0]
            if op.startswith("v_smfmac"):
                self.srcab = R[1] + R[2] + R[3]
                self.srcc = R[0]
            else:
                self.srcab = R[1] + R[2]
                self.srcc = R[3]
            self.src = self.srcab + self.srcc
        elif self.valu:
            if op.startswith("v_permlane32_swap") or op.startswith("v_permlane16_swap") or op.startswith("v_swap"):
                self.dst = R[0] + R[1]
                self.src = R[0] + R[1]
            elif op.startswith("v_cmp"):
                self.dst = R[0]
                self.src = sum(R[1:], [])
            else:
                self.dst = R[0]
                self.src = sum(R[1:], [])
                if op.startswith(("v_fmac", "v_dot2c")):
                    self.src += R[0]
                if op.startswith("v_cndmask") and len(toks) == 3:
                    self.src.append("vcc")
        elif self.ds:
            if op.startswith("ds_read"):
                self.dst = R[0]
                self.src = sum(R[1:], [])
            else:
                self.src = sum(R, [])
        elif self.vmem:
            if "load" in op and "lds" not in self.mods:
                self.dst = R[0]
                self.src = sum(R[1:], [])
            else:
                self.src = sum(R, [])
                if "lds" in self.mods:
                    self.src.append("m0")
            self.wide_store = "store" in op and op.endswith(("x3", "x4"))
            self.store_data = R[0] if "store" in op else []
        elif op.startswith("s_"):
            if op in ("s_nop", "s_waitcnt", "s_barrier", "s_setprio", "s_endpgm", "s_branch", "s_sleep") or \
                    op.startswith(("s_cbranch", "s_cmp")):
                self.src = sum(R, [])
            else:
                self.dst = R[0] if R else []
                self.src = sum(R[1:], [])
                if "saveexec" in op:
                    self.dst = self.dst + ["exec"]
        self.states = 1
        if op == "s_nop":
            self.states = int(toks[0], 0) + 1


def check_hazards(lines):
    ins = []
    for ln in lines:
        t = ln.strip()
        if not t or t.startswith((";", ".")) or t.endswith(":"):
            continue
        ins.append(Ins(t))
    problems = []
    for i, c in enumerate(ins):
        dist = 0
        for j in range(i - 1, max(-1, i - 24), -1):
            p = ins[j]
            need = 0
            pd = set(p.dst)
            raw = pd & set(c.src)
            waw = pd & set(c.dst)
            if p.valu and c.mfma and raw:
                need = 2
            if p.mfma:
                n = 12 if p.passes == 8 else 8
                if c.mfma:
                    if pd & set(c.srcab):
                        need = n
                    elif pd & set(c.srcc):
                        same = set(c.srcc) == pd and c.passes == p.passes
                        need = 0 if same else (10 if p.passes == 8 else 6)
                    elif waw:
                        need = n
                elif (c.valu or c.ds or c.vmem) and (raw or waw):
                    need = n
                if c.valu and set(p.srcc) & set(c.dst):
                    need = max(need, 7 if p.passes == 8 else 3)
            if p.trans and c.valu and not c.trans and raw:
                need = max(need, 1)
            if p.valu and c.op.startswith(("v_permlane", "v_readlane", "v_readfirstlane")) and raw:
                need = max(need, 2 if c.op.startswith("v_permlane") else 1)
            if p.valu:
                sg = {r for r in pd if r[0] == "s" or r == "vcc"}
                if sg & set(c.src):
                    if c.valu:
                        need = max(need, 2)
                    if c.vmem:
                        need = max(need, 5)
            if p.op.startswith("s_") and "m0" in pd and c.vmem and "m0" in c.src:
                need = max(need, 1)
            if p.vmem and getattr(p, "wide_store", False) and set(p.store_data) & set(c.dst):
                need = max(need, 2)
            if need > dist:
                problems.append(f"need {need} have {dist}: [{p.text}] -> [{c.text}]")
            dist += p.states
            if dist > 20:
                break
    return problems


class Asm:
    def __init__(self):
        self.lines = []

    def __call__(self, *texts):
        for t in texts:
            if isinstance(t, (list, tuple)):
                self(*t)
            else:
                for ln in t.split("\n"):
                    ln = ln.strip()
                    if ln:
                        self.lines.append(ln if ln.endswith(":") or ln.startswith(".") else "    " + ln)

    def text(self):
        return "\n".join(self.lines) + "\n"


def vr(a, n=1):
    return f"v{a}" if n == 1 else f"v[{a}:{a + n - 1}]"


def sr(a, n=1):
    return f"s{a}" if n == 1 else f"s[{a}:{a + n - 1}]"
```

```python
import math
import struct
import sys

from asmlib import Asm, check_hazards, sr, vr

NAME = "standalone__modern_conv_block_convnext__vision_kernel"
NB = 9633792
ROWB = 43008
OOB = 0x40000000


def f2u(x):
    return struct.unpack("<I", struct.pack("<f", x))[0]


K0 = math.sqrt(2.0 / math.pi)
LOG2E = 1.0 / math.log(2.0)
CA = 2 * K0 * LOG2E
CB = 2 * K0 * 0.044715 * LOG2E
SC = CB ** (1.0 / 3.0)
CAP = CA / SC

SLOT = 12544
NS1 = 5
X0 = NS1 * SLOT
PL = 3472
DWT = X0 + 24 * PL
CONST = 12 * SLOT
LDS_BYTES = DWT + 12288 + 128
assert CONST >= DWT and CONST + 2560 <= LDS_BYTES and LDS_BYTES <= 163840


def rowl(r):
    return r * 160 + (r >> 3) * 128


sX, sDW, sW1, sW2, sOUT, sCT = 20, 24, 28, 32, 36, 40
sW, sX0, sY0 = 44, 45, 46
sT = 47
sAA, sONE = 60, 62
sSCALE = 64
sSTAMP = 66

AF, CACC, STG, BB, DWR = 8, 56, 104, 144, 192
TMP = 198
XB, TB, PB, ACC, XN, W1F, W2F = 8, 72, 104, 112, 160, 184, 208
vW1, vW2, vBI, vGO, vST, vSW, vSR, vLN, vC2, vD1, vD2, vMASK = 232, 233, 234, 235, 236, 242, 243, 244, 246, 247, 248, 249
vIDX, vXG, vXW, vXB, vEX, vAF, vCW = 250, 251, 252, 253, 254, 255, 7
NV = 256


def srd(a, s, ptr, nbytes):
    a(f"s_mov_b32 {sr(s)}, {sr(ptr)}", f"s_mov_b32 {sr(s + 1)}, {sr(ptr + 1)}",
      f"s_mov_b32 {sr(s + 2)}, {nbytes}", f"s_mov_b32 {sr(s + 3)}, 0x20000")


class Gen:
    def __init__(self, **o):
        self.o = dict(xpol="", stamps=False, order=[3, 7, 2, 6, 4, 8, 5, 1, 9, 0],
                      phases=[(2, [3]), (2, [2, 6]), (2, [4]), (2, [1]), (2, [5, 0])], stpol="sc1")
        self.o.update(o)
        self.a = Asm()
        self.nstamp = 0

    def stamp(self):
        if self.o["stamps"]:
            self.a(f"s_memtime {sr(sSTAMP + 2 * self.nstamp, 2)}")
            self.nstamp += 1

    def dma_slots(self, slots):
        a = self.a
        a("s_mov_b32 exec_hi, 0xffff")
        for t in slots:
            a(f"s_add_u32 m0, {sr(sT)}, {t * SLOT}", f"s_movk_i32 {sr(sT + 2)}, {t * 64}",
              f"buffer_load_dwordx4 {vr(vD1)}, {sr(sW1, 4)}, {sr(sT + 2)} offen lds",
              f"s_add_u32 m0, {sr(sT + 1)}, {t * SLOT}", f"s_mov_b32 {sr(sT + 2)}, {t * 6144}",
              f"buffer_load_dwordx4 {vr(vD2)}, {sr(sW2, 4)}, {sr(sT + 2)} offen lds")
        a("s_mov_b32 exec_hi, -1")

    def prologue(self):
        a, o = self.a, self.o
        t0, t1, t2, t3, t4, t5 = range(TMP, TMP + 6)
        self.stamp()
        a("s_cmp_ge_u32 s2, 256", "s_cbranch_scc1 L_end", "s_load_dwordx16 s[4:19], s[0:1], 0")
        a("v_lshrrev_b32 v1, 6, v0", "v_and_b32 v2, 63, v0", f"v_readfirstlane_b32 {sr(sW)}, v1")
        a(f"s_and_b32 {sr(sX0)}, s2, 7", f"s_lshl_b32 {sr(sX0)}, {sr(sX0)}, 1", f"s_bfe_u32 {sr(sT)}, s2, 0x10003",
          f"s_add_u32 {sr(sX0)}, {sr(sX0)}, {sr(sT)}", f"s_mul_i32 {sr(sX0)}, {sr(sX0)}, 14",
          f"s_lshr_b32 {sr(sY0)}, s2, 4", f"s_mul_i32 {sr(sY0)}, {sr(sY0)}, 14")
        a(f"v_lshrrev_b32 {vr(t0)}, 3, v2", f"v_and_b32 {vr(t1)}, 7, v2",
          f"v_mul_u32_u24 {vr(t2)}, 1344, {vr(t0)}", f"v_mul_u32_u24 {vr(t3)}, 192, {vr(t1)}",
          f"v_lshlrev_b32 {vr(t4)}, 3, v1", f"v_add3_u32 {vr(t2)}, {vr(t2)}, {vr(t3)}, {vr(t4)}",
          f"v_mul_u32_u24 {vr(t0)}, {vr(t0)}, {vr(t1)}", f"v_subrev_u32 {vr(t2)}, 1536, {vr(t2)}",
          f"v_mov_b32 v3, {OOB}", f"v_cmp_eq_u32 vcc, 0, {vr(t0)}")
        a(f"v_lshrrev_b32 {vr(t0)}, 2, v2", f"v_min_u32 {vr(t0)}, 14, {vr(t0)}",
          f"v_cndmask_b32 v4, {vr(t2)}, v3, vcc",
          f"v_mul_u32_u24 {vr(t1)}, 52, {vr(t0)}", f"v_lshrrev_b32 {vr(t1)}, 8, {vr(t1)}",
          f"v_mul_u32_u24 {vr(t2)}, 5, {vr(t1)}", f"v_sub_u32 {vr(t0)}, {vr(t0)}, {vr(t2)}",
          f"v_and_b32 {vr(t2)}, 3, v1", f"v_mul_u32_u24 {vr(t2)}, 5, {vr(t2)}",
          f"v_add_u32 {vr(t0)}, {vr(t0)}, {vr(t2)}",
          f"v_and_b32 {vr(t2)}, 3, v2", f"v_lshl_add_u32 {vr(t1)}, {vr(t1)}, 2, {vr(t2)}",
          f"s_sub_u32 {sr(sT)}, {sr(sX0)}, 3", f"v_add_u32 {vr(t2)}, {sr(sT)}, {vr(t0)}",
          f"v_cmp_gt_u32 vcc, 224, {vr(t2)}",
          f"v_mul_u32_u24 {vr(t3)}, 192, {vr(t2)}", f"v_lshl_add_u32 {vr(t3)}, {vr(t1)}, 4, {vr(t3)}",
          f"v_cndmask_b32 {vr(t3)}, v3, {vr(t3)}, vcc",
          f"s_lshr_b32 {sr(sT + 1)}, {sr(sW)}, 2", f"s_add_u32 {sr(sT)}, {sr(sY0)}, {sr(sT + 1)}",
          f"s_sub_u32 {sr(sT)}, {sr(sT)}, 3", f"s_mul_i32 {sr(sT)}, {sr(sT)}, {ROWB}",
          f"v_add_u32 {vr(vXG)}, {sr(sT)}, {vr(t3)}")
        a("s_waitcnt lgkmcnt(0)")
        srd(a, sDW, 6, 9408)
        for j in range(3):
            a(f"buffer_load_dwordx2 {vr(DWR + 2 * j, 2)}, v4, {sr(sDW, 4)}, 0 offen offset:{64 * j}")
        srd(a, sX, 4, NB)
        for i, p in enumerate(o["order"]):
            tv = t4 + (i & 1)
            a(f"v_add_u32 {vr(tv)}, {2 * p * ROWB}, {vr(vXG)}")
            if p <= 1:
                a(f"v_min_u32 {vr(tv)}, {vr(tv)}, v3")
            a(f"buffer_load_dwordx4 {vr(STG + 4 * i, 4)}, {vr(tv)}, {sr(sX, 4)}, 0 offen {o['xpol']}")
        a(f"v_mul_u32_u24 {vr(t1)}, {2 * PL}, {vr(t1)}", f"v_lshl_add_u32 {vr(t1)}, {vr(t0)}, 3, {vr(t1)}",
          f"s_mul_i32 {sr(sT + 1)}, {sr(sT + 1)}, 160", f"s_add_u32 {sr(sT + 1)}, {sr(sT + 1)}, {X0}",
          f"v_add_u32 {vr(vXW)}, {sr(sT + 1)}, {vr(t1)}")
        a(f"s_cmp_lt_u32 {sr(sW)}, 3",
          f"s_cselect_b32 {sr(sCT)}, s10, s14", f"s_cselect_b32 {sr(sCT + 1)}, s11, s15",
          f"s_movk_i32 {sr(sT)}, 192", f"s_cselect_b32 {sr(sCT + 2)}, 768, {sr(sT)}",
          f"s_cmp_lt_u32 {sr(sW)}, 4",
          f"s_cselect_b32 {sr(sCT)}, {sr(sCT)}, s16", f"s_cselect_b32 {sr(sCT + 1)}, {sr(sCT + 1)}, s17",
          f"s_mov_b32 {sr(sCT + 3)}, 0x20000",
          f"s_mov_b32 {sr(sT)}, {f2u(SC)}", f"s_cselect_b32 {sr(sSCALE)}, {sr(sT)}, {f2u(1.0 / SC)}",
          f"s_min_u32 {sr(sT)}, {sr(sW)}, 4", f"s_lshl_b32 {sr(sT + 1)}, {sr(sT)}, 9",
          f"s_add_u32 {sr(sT + 1)}, {sr(sT + 1)}, {CONST}",
          f"v_lshl_add_u32 {vr(vCW)}, v2, 3, {sr(sT + 1)}",
          f"s_cmp_lt_u32 {sr(sW)}, 3", f"s_cselect_b32 {sr(sT)}, {sr(sW)}, 0", f"s_lshl_b32 {sr(sT)}, {sr(sT)}, 8",
          f"v_lshl_add_u32 {vr(t0)}, v2, 2, {sr(sT)}",
          f"buffer_load_dword v6, {vr(t0)}, {sr(sCT, 4)}, 0 offen")
        srd(a, sW1, 8, 73728)
        srd(a, sW2, 12, 73728)
        a(f"s_mul_i32 {sr(sT)}, {sr(sW)}, 12", f"v_lshrrev_b32 {vr(t0)}, 2, v2",
          f"v_add_u32 {vr(t0)}, {sr(sT)}, {vr(t0)}",
          f"v_lshrrev_b32 {vr(t1)}, 1, {vr(t0)}", f"v_and_b32 {vr(t1)}, 2, {vr(t1)}",
          f"v_and_b32 {vr(t2)}, 3, v2", f"v_xor_b32 {vr(t1)}, {vr(t1)}, {vr(t2)}",
          f"v_mul_u32_u24 {vr(t0)}, 768, {vr(t0)}", f"v_lshl_add_u32 {vr(vD1)}, {vr(t1)}, 4, {vr(t0)}",
          f"s_mul_i32 {sr(sT)}, {sr(sW)}, 768", f"v_lshl_add_u32 {vr(vD2)}, v2, 4, {sr(sT)}",
          f"s_mul_i32 {sr(sT + 1)}, {sr(sW)}, 800", f"s_add_u32 {sr(sT + 1)}, {sr(sT + 1)}, 6144")
        self.dma_slots(range(NS1))
        self.stamp()
        self.addresses()
        a(f"v_lshlrev_b32 {vr(t0)}, 3, v0", f"v_add_u32 {vr(t0)}, {DWT}, {vr(t0)}",
          f"v_and_b32 {vr(t1)}, 15, v2", f"v_lshlrev_b32 {vr(t1)}, 3, {vr(t1)}",
          f"v_add_u32 {vr(t1)}, {DWT + 12288}, {vr(t1)}",
          f"v_mov_b32 {vr(t2)}, 0", f"v_mov_b32 {vr(t3)}, 0",
          f"ds_write_b64 {vr(t1)}, {vr(t2, 2)}")
        for i in range(48):
            a(f"v_mov_b32 {vr(CACC + i)}, 0")
        a(f"s_waitcnt vmcnt({11 + 2 * NS1})")
        for j in range(3):
            a(f"ds_write_b64 {vr(t0)}, {vr(DWR + 2 * j, 2)} offset:{4096 * j}")
        a("s_waitcnt lgkmcnt(0)", "s_barrier")
        n = 0
        for j in range(3):
            for T in range(4):
                for d in range(4):
                    a(f"ds_read_u16 {vr(AF + 16 * j + 4 * T + d)}, {vr(vAF)} offset:{4096 * j + 128 * T + 8 * d}")
                    n += 1
        self.stamp()

    def addresses(self):
        a = self.a
        t0, t1, t2, t3, t4, t5, t6, t7 = range(TMP, TMP + 8)
        srd(a, sOUT, 18, NB)
        a(f"s_mov_b32 {sr(sAA)}, {f2u(CAP)}", f"s_mov_b32 {sr(sAA + 1)}, {f2u(CAP)}",
          f"s_mov_b32 {sr(sONE)}, 1.0", f"s_mov_b32 {sr(sONE + 1)}, 1.0",
          f"v_mov_b32 {vr(vMASK)}, 0xffff0000")
        a(f"v_and_b32 {vr(t0)}, 3, v2",
          f"v_mul_u32_u24 {vr(vIDX)}, 0x5555, {vr(t0)}",
          f"v_bfe_u32 {vr(t1)}, v2, 2, 1",
          f"v_bfe_u32 {vr(t2)}, v2, 3, 1",
          f"v_bfe_u32 {vr(t3)}, v2, 4, 1",
          f"v_lshrrev_b32 {vr(t4)}, 5, v2",
          f"v_sub_u32 {vr(t5)}, {vr(t4)}, {vr(t2)}", f"v_lshlrev_b32 {vr(t5)}, 6, {vr(t5)}",
          f"v_lshlrev_b32 {vr(t6)}, 2, {vr(t3)}", f"v_sub_u32 {vr(t6)}, {vr(t6)}, {vr(t1)}",
          f"v_lshl_add_u32 {vr(t5)}, {vr(t6)}, 3, {vr(t5)}", f"v_lshl_add_u32 {vr(t5)}, {vr(t0)}, 1, {vr(t5)}",
          f"s_lshl_b32 {sr(sT + 3)}, {sr(sW)}, 9", f"s_add_u32 {sr(sT + 3)}, {sr(sT + 3)}, {DWT + 72}",
          f"v_add_u32 {vr(vAF)}, {sr(sT + 3)}, {vr(t5)}")
        a(f"v_and_b32 {vr(t5)}, 7, v2",
          f"v_lshrrev_b32 {vr(t6)}, 4, v2", f"v_add_u32 {vr(t6)}, {vr(t5)}, {vr(t6)}",
          f"v_mul_u32_u24 {vr(t7)}, 1408, {vr(t2)}", f"v_lshl_add_u32 {vr(t6)}, {vr(t6)}, 4, {vr(t7)}",
          f"s_mul_i32 {sr(sT + 3)}, {sr(sW)}, {PL}", f"s_add_u32 {sr(sT + 3)}, {sr(sT + 3)}, {X0}",
          f"v_add_u32 {vr(vXB)}, {sr(sT + 3)}, {vr(t6)}",
          f"v_lshl_add_u32 {vr(t6)}, {vr(t2)}, 3, {vr(t4)}", f"v_mul_u32_u24 {vr(t6)}, 14, {vr(t6)}",
          f"v_lshl_add_u32 {vr(t6)}, {vr(t5)}, 1, {vr(t6)}", f"v_add_u32 {vr(t6)}, {vr(t6)}, {vr(t3)}",
          f"v_cmp_eq_u32 vcc, 7, {vr(t5)}", f"v_mov_b32 {vr(t7)}, 300", "s_nop 0",
          f"v_cndmask_b32 {vr(t6)}, {vr(t6)}, {vr(t7)}, vcc",
          f"v_lshl_add_u32 {vr(vEX)}, {vr(t6)}, 3, {sr(sT + 3)}")
        a(f"v_bfe_u32 {vr(t5)}, v2, 2, 2",
          f"v_lshl_add_u32 {vr(t6)}, {vr(t4)}, 2, {vr(t5)}", f"v_lshlrev_b32 {vr(t6)}, 6, {vr(t6)}",
          f"v_xor_b32 {vr(t7)}, {vr(t3)}, {vr(t4)}", f"v_lshl_add_u32 {vr(t7)}, {vr(t7)}, 2, {vr(t0)}",
          f"v_lshl_add_u32 {vr(vW1)}, {vr(t7)}, 3, {vr(t6)}",
          f"v_mul_u32_u24 {vr(t6)}, 800, {vr(t4)}", f"v_mul_u32_u24 {vr(t7)}, 192, {vr(t5)}",
          f"v_add_u32 {vr(t6)}, {vr(t6)}, {vr(t7)}",
          f"v_and_b32 {vr(t7)}, 1, {vr(t0)}", f"v_lshlrev_b32 {vr(t7)}, 1, {vr(t7)}",
          f"v_lshrrev_b32 {vr(t1)}, 1, {vr(t0)}", f"v_add_u32 {vr(t7)}, {vr(t7)}, {vr(t1)}",
          f"v_lshl_add_u32 {vr(t7)}, {vr(t3)}, 2, {vr(t7)}", f"v_lshl_add_u32 {vr(t6)}, {vr(t7)}, 3, {vr(t6)}",
          f"v_add_u32 {vr(vW2)}, 6144, {vr(t6)}",
          f"v_lshlrev_b32 {vr(t6)}, 4, {vr(t4)}", f"v_add_u32 {vr(vBI)}, {CONST}, {vr(t6)}",
          f"v_lshlrev_b32 {vr(t6)}, 5, {vr(t4)}", f"v_add_u32 {vr(vC2)}, {CONST + 1536}, {vr(t6)}")
        a(f"v_and_b32 {vr(t0)}, 31, v2", f"s_lshl_b32 {sr(sT + 3)}, {sr(sW)}, 5",
          f"v_add_u32 {vr(t1)}, {sr(sT + 3)}, {vr(t0)}",
          f"v_mul_u32_u24 {vr(t6)}, {PL}, {vr(t4)}", f"v_lshl_add_u32 {vr(t6)}, {vr(t1)}, 3, {vr(t6)}",
          f"v_add_u32 {vr(vLN)}, {X0}, {vr(t6)}", f"v_add_u32 {vr(vLN + 1)}, {X0 + 12 * PL}, {vr(t6)}",
          f"s_mul_i32 {sr(sT + 4)}, {sr(sY0)}, {ROWB}", f"s_mul_i32 {sr(sT + 5)}, {sr(sX0)}, 192",
          f"s_add_u32 {sr(sT + 4)}, {sr(sT + 4)}, {sr(sT + 5)}",
          f"v_mul_u32_u24 {vr(t6)}, 4682, {vr(t1)}", f"v_lshrrev_b32 {vr(t6)}, 16, {vr(t6)}",
          f"v_mul_u32_u24 {vr(t6)}, {ROWB - 2688}, {vr(t6)}", f"v_mul_u32_u24 {vr(t7)}, 192, {vr(t1)}",
          f"v_add3_u32 {vr(t6)}, {vr(t6)}, {vr(t7)}, {sr(sT + 4)}",
          f"v_cmp_gt_u32 vcc, 196, {vr(t1)}", f"v_lshl_add_u32 {vr(t6)}, {vr(t4)}, 4, {vr(t6)}", "s_nop 0",
          f"v_cndmask_b32 {vr(vGO)}, v3, {vr(t6)}, vcc")
        a(f"s_mul_i32 {sr(sT + 5)}, {sr(sW)}, {SLOT}", f"s_sub_u32 {sr(sT + 6)}, {sr(sT + 5)}, {5 * SLOT - 6144}",
          f"s_cmp_lt_u32 {sr(sW)}, 5", f"s_cselect_b32 {sr(sT + 5)}, {sr(sT + 5)}, {sr(sT + 6)}",
          f"v_bfe_u32 {vr(t6)}, v2, 1, 2", f"v_xor_b32 {vr(t6)}, {vr(t6)}, {vr(t4)}",
          f"v_mul_u32_u24 {vr(t7)}, 192, {vr(t0)}", f"v_lshl_add_u32 {vr(t6)}, {vr(t6)}, 4, {vr(t7)}",
          f"v_add_u32 {vr(vSW)}, {sr(sT + 5)}, {vr(t6)}",
          f"v_lshl_add_u32 {vr(vSR)}, v2, 4, {sr(sT + 5)}")
        a(f"s_lshl_b32 {sr(sT + 3)}, {sr(sW)}, 4")
        for k, (base, res) in enumerate(((0, 0), (2, 16), (5, 8))):
            a(f"v_add_u32 {vr(t0)}, {res}, v2",
              f"v_mul_u32_u24 {vr(t1)}, 43, {vr(t0)}", f"v_lshrrev_b32 {vr(t1)}, 10, {vr(t1)}",
              f"v_mul_u32_u24 {vr(t2)}, 24, {vr(t1)}", f"v_sub_u32 {vr(t0)}, {vr(t0)}, {vr(t2)}",
              f"v_add_u32 {vr(t1)}, {base}, {vr(t1)}", f"v_and_b32 {vr(t2)}, 3, {vr(t1)}",
              f"v_xor_b32 {vr(t0)}, {vr(t0)}, {vr(t2)}",
              f"v_lshl_add_u32 {vr(t0)}, {vr(t0)}, 4, {sr(sT + 4)}",
              f"v_add_u32 {vr(t1)}, {sr(sT + 3)}, {vr(t1)}")
            for half in range(2):
                if half:
                    a(f"v_add_u32 {vr(t1)}, 8, {vr(t1)}")
                a(f"v_mul_u32_u24 {vr(t2)}, 147, {vr(t1)}", f"v_lshrrev_b32 {vr(t2)}, 10, {vr(t2)}",
                  f"v_mul_u32_u24 {vr(t2)}, {ROWB - 2688}, {vr(t2)}", f"v_mul_u32_u24 {vr(t3)}, 384, {vr(t1)}",
                  f"v_cmp_gt_u32 vcc, 98, {vr(t1)}",
                  f"v_add3_u32 {vr(t2)}, {vr(t2)}, {vr(t3)}, {vr(t0)}", "s_nop 0",
                  f"v_cndmask_b32 {vr(vST + k + 3 * half)}, v3, {vr(t2)}, vcc")

    def conv(self):
        a, o = self.a, self.o
        rnd = 0
        nafter = 1 + 2 * NS1
        last = len(o["phases"]) - 1
        for ph, (nr, ys) in enumerate(o["phases"]):
            for _ in range(nr):
                p = o["order"][rnd]
                a(f"s_waitcnt vmcnt({9 - rnd + nafter})",
                  f"ds_write_b64 {vr(vXW)}, {vr(STG + 4 * rnd, 2)} offset:{rowl(2 * p)}",
                  f"ds_write_b64 {vr(vXW)}, {vr(STG + 4 * rnd + 2, 2)} offset:{rowl(2 * p) + PL}")
                rnd += 1
            if ph == last:
                a(f"s_waitcnt vmcnt({2 * NS1})",
                  "v_lshlrev_b32 v4, 16, v6", f"v_and_b32 v5, {vr(vMASK)}, v6",
                  f"v_mul_f32 v4, {sr(sSCALE)}, v4", f"v_mul_f32 v5, {sr(sSCALE)}, v5",
                  f"ds_write_b64 {vr(vCW)}, v[4:5]")
            a("s_waitcnt lgkmcnt(0)", "s_barrier")
            items = [(y, j) for y in ys for j in range(3)]
            for c in range(0, len(items), 6):
                grp = items[c:c + 6]
                for n, (y, j) in enumerate(grp):
                    for s in range(2):
                        a(f"ds_read_b128 {vr(BB + 8 * n + 4 * s, 4)}, {vr(vXB)} offset:{8 * PL * j + rowl(2 * y + s)}")
                for n, (y, j) in enumerate(grp):
                    a(f"s_waitcnt lgkmcnt({2 * (len(grp) - 1 - n)})")
                    for b in range(4):
                        T = y - b
                        if 0 <= T <= 3:
                            a(f"v_smfmac_f32_16x16x64_bf16 {vr(CACC + 16 * j + 4 * b, 4)}, "
                              f"{vr(AF + 16 * j + 4 * T, 4)}, {vr(BB + 8 * n, 8)}, {vr(vIDX)}")
        assert rnd == 10
        self.stamp()
        a("s_nop 7")
        for j in range(3):
            for b in range(4):
                r = CACC + 16 * j + 4 * b
                t = BB + 2 * (4 * j + b)
                a(f"v_cvt_pk_bf16_f32 {vr(t)}, {vr(r)}, {vr(r + 1)}",
                  f"v_cvt_pk_bf16_f32 {vr(t + 1)}, {vr(r + 2)}, {vr(r + 3)}",
                  f"ds_write_b64 {vr(vEX)}, {vr(t, 2)} offset:{8 * PL * j + 224 * b}")
        a("s_waitcnt vmcnt(0) lgkmcnt(0)", "s_barrier")

    def ln_reads(self):
        a = self.a
        for s in range(6):
            for e in range(2):
                cg = 4 * s + 2 * e
                a(f"ds_read_b64 {vr(XN + 4 * s + 2 * e, 2)}, {vr(vLN + cg // 12)} offset:{(cg % 12) * PL}")
        a("s_waitcnt lgkmcnt(0)", "s_barrier")
        for mt in range(3):
            for q in range(4):
                a(f"ds_read_b128 {vr(ACC + 16 * mt + 4 * q, 4)}, {vr(vC2)} offset:{128 * mt + 64 * (q >> 1) + 16 * (q & 1)}")

    def dma2(self):
        self.a(f"s_mul_i32 {sr(sT)}, {sr(sW)}, 768",
               f"s_mul_i32 {sr(sT + 1)}, {sr(sW)}, 800", f"s_add_u32 {sr(sT + 1)}, {sr(sT + 1)}, 6144")
        self.dma_slots(range(NS1, 12))

    def ln_math(self):
        a = self.a
        F = XB
        P = lambda r: vr(r, 2)
        s0, s1, q0, q1 = TB, TB + 2, TB + 4, TB + 6
        for d in range(24):
            a(f"v_lshlrev_b32 {vr(F + 2 * d)}, 16, {vr(XN + d)}", f"v_and_b32 {vr(F + 2 * d + 1)}, {vr(vMASK)}, {vr(XN + d)}")
        a(f"v_pk_add_f32 {P(s0)}, {P(F)}, {P(F + 2)}", f"v_pk_mul_f32 {P(q0)}, {P(F)}, {P(F)}",
          f"v_pk_add_f32 {P(s1)}, {P(F + 4)}, {P(F + 6)}", f"v_pk_mul_f32 {P(q1)}, {P(F + 2)}, {P(F + 2)}")
        for d in range(2, 24):
            q = q0 if d % 2 == 0 else q1
            a(f"v_pk_fma_f32 {P(q)}, {P(F + 2 * d)}, {P(F + 2 * d)}, {P(q)}")
            if d >= 4:
                s = s0 if d % 2 == 0 else s1
                a(f"v_pk_add_f32 {P(s)}, {P(s)}, {P(F + 2 * d)}")
        a(f"v_pk_add_f32 {P(s0)}, {P(s0)}, {P(s1)}", f"v_pk_add_f32 {P(q0)}, {P(q0)}, {P(q1)}",
          f"v_add_f32 {vr(s0)}, {vr(s0)}, {vr(s0 + 1)}", f"v_add_f32 {vr(q0)}, {vr(q0)}, {vr(q0 + 1)}", "s_nop 1",
          f"v_permlane32_swap_b32 {vr(s0)}, {vr(q0)}",
          f"v_add_f32 {vr(s0)}, {vr(s0)}, {vr(q0)}", f"v_mov_b32 {vr(q0)}, {vr(s0)}", "s_nop 1",
          f"v_permlane32_swap_b32 {vr(s0)}, {vr(q0)}",
          f"v_mul_f32 {vr(s0)}, {f2u(1.0 / 96)}, {vr(s0)}", f"v_mul_f32 {vr(q0)}, {f2u(1.0 / 96)}, {vr(q0)}",
          f"v_fma_f32 {vr(q0)}, -{vr(s0)}, {vr(s0)}, {vr(q0)}", f"v_max_f32 {vr(q0)}, 0, {vr(q0)}",
          f"v_add_f32 {vr(q0)}, {f2u(1e-5)}, {vr(q0)}", f"v_rsq_f32 {vr(q0)}, {vr(q0)}", "s_nop 0",
          f"v_mul_f32 {vr(q0)}, {f2u(SC)}, {vr(q0)}", f"v_mul_f32_e64 {vr(s0)}, -{vr(s0)}, {vr(q0)}")
        for d in range(24):
            a(f"v_pk_fma_f32 {P(F + 2 * d)}, {P(F + 2 * d)}, {P(q0)}, {P(s0)} op_sel_hi:[1,0,0]")
        for d in range(24):
            a(f"v_cvt_pk_bf16_f32 {vr(XN + d)}, {vr(F + 2 * d)}, {vr(F + 2 * d + 1)}")

    def mlp(self, role):
        a = self.a
        P = lambda r: vr(r, 2)
        X = lambda b, i=0: XB + 16 * (b % 4) + i
        T = lambda b, i=0: TB + 16 * (b % 2) + i
        ok = lambda t: 0 <= t <= 11
        prS, prT = (3, 0) if role == "a" else (2, 1)
        base1 = base2 = baseb = 0
        for k in range(-2, 13):
            S = []
            if ok(k - 1):
                S += [f"v_pk_mul_f32 {P(X(k - 1, i))}, {P(X(k - 1, i))}, {P(T(k - 1, i))}" for i in range(0, 16, 2)]
            if ok(k):
                S += [f"v_pk_add_f32 {P(T(k, i))}, {P(T(k, i))}, {sr(sONE, 2)}" for i in range(0, 16, 2)]
            if ok(k + 1):
                S += [f"v_pk_fma_f32 {P(T(k + 1, i))}, {P(X(k + 1, i))}, {P(X(k + 1, i))}, {sr(sAA, 2)}" for i in range(0, 16, 2)]
                S += [f"v_pk_mul_f32 {P(T(k + 1, i))}, {P(X(k + 1, i))}, {P(T(k + 1, i))} neg_lo:[1,0] neg_hi:[1,0]"
                      for i in range(0, 16, 2)]
            L = []
            n1 = n2 = 0
            if k == 3:
                L += ["s_waitcnt vmcnt(0)", "s_barrier"]
            if ok(k + 2):
                t = k + 2
                if (t - base1) * SLOT > 50000:
                    L.append(f"v_add_u32 {vr(vW1)}, {(t - base1) * SLOT}, {vr(vW1)}")
                    base1 = t
                L += [f"ds_read_b128 {vr(X(t, 4 * q), 4)}, {vr(vBI)} offset:{128 * t + 32 * q}" for q in range(4)]
                for s in range(6):
                    for e in range(2):
                        L.append(f"ds_read_b64_tr_b16 {vr(W1F + 4 * s + 2 * e, 2)}, {vr(vW1)} "
                                 f"offset:{(t - base1) * SLOT + 1024 * s + 512 * e}")
                n1 = 16
            if ok(k - 1):
                t = k - 1
                if (t - base2) * SLOT > 50000:
                    L.append(f"v_add_u32 {vr(vW2)}, {(t - base2) * SLOT}, {vr(vW2)}")
                    base2 = t
                for ks in range(2):
                    for mt in range(3):
                        for e in range(2):
                            L.append(f"ds_read_b64_tr_b16 {vr(W2F + 12 * ks + 4 * mt + 2 * e, 2)}, {vr(vW2)} "
                                     f"offset:{(t - base2) * SLOT + (4 * ks + 2 * e) * 800 + 64 * mt}")
                n2 = 12
            if k == 10:
                L += [f"buffer_load_dwordx4 {vr(W1F + 4 * j, 4)}, {vr(vGO)}, {sr(sX, 4)}, 0 offen offset:{32 * j}" for j in range(6)]
            tr = []
            if ok(k):
                tr += [f"v_rcp_f32 {vr(T(k, i))}, {vr(T(k, i))}" for i in range(16)]
            if ok(k + 1):
                tr += [f"v_exp_f32 {vr(T(k + 1, i))}, {vr(T(k + 1, i))}" for i in range(16)]
            cv = []
            if ok(k - 1):
                cv = [f"v_cvt_pk_bf16_f32 {vr(PB + i)}, {vr(X(k - 1, 2 * i))}, {vr(X(k - 1, 2 * i + 1))}" for i in range(8)]
            g1, g2 = [], []
            if ok(k + 2):
                xb = X(k + 2)
                g1 = [f"v_mfma_f32_32x32x16_bf16 {vr(xb, 16)}, {vr(W1F + 4 * s, 4)}, {vr(XN + 4 * s, 4)}, {vr(xb, 16)}"
                      for s in range(6)]
            if ok(k - 1):
                g2 = [f"v_mfma_f32_32x32x16_bf16 {vr(ACC + 16 * mt, 16)}, {vr(W2F + 12 * ks + 4 * mt, 4)}, "
                      f"{vr(PB + 4 * ks, 4)}, {vr(ACC + 16 * mt, 16)}" for ks in range(2) for mt in range(3)]
            Tph = []
            tr = list(tr)
            cv = list(cv)
            if g1:
                if tr:
                    Tph.append(tr.pop(0))
            else:
                Tph += cv
                cv = []
                Tph += [tr.pop(0) for _ in range(min(2, len(tr)))] or ["s_nop 1"]
            mf = g1 + g2
            for j, m in enumerate(mf):
                if j == 0:
                    Tph.append(f"s_waitcnt lgkmcnt({n2 if g1 else 0})")
                if j == 6:
                    Tph.append("s_waitcnt lgkmcnt(0)")
                Tph.append(m)
                left = len(mf) - j
                if cv:
                    Tph += [cv.pop(0), cv.pop(0)]
                    n = 2
                else:
                    n = -(-len(tr) // left)
                Tph += [tr.pop(0) for _ in range(min(n, len(tr)))]
            Tph += tr
            if k == -2 or k == -1:
                Tph.append("s_nop 11")
            if role == "b":
                a(L)
            if S:
                a(f"s_setprio {prS}", S)
            a(f"s_setprio {prT}")
            if role == "a":
                a(L)
            a(Tph)

    def epilogue(self):
        a, o = self.a, self.o
        P = lambda r: vr(r, 2)
        G = XB
        for mt in range(3):
            for q in range(4):
                a(f"ds_read_b128 {vr(G + 16 * mt + 4 * q, 4)}, {vr(vC2)} offset:{512 + 128 * mt + 64 * (q >> 1) + 16 * (q & 1)}")
        a(f"v_xor_b32 {vr(vLN)}, 32, {vr(vSW)}", "s_waitcnt vmcnt(0)")
        U = lambda j: (TB if j < 4 else XN - 32) + 8 * j
        for j in range(6):
            for d in range(4):
                a(f"v_lshlrev_b32 {vr(U(j) + 2 * d)}, 16, {vr(W1F + 4 * j + d)}",
                  f"v_and_b32 {vr(U(j) + 2 * d + 1)}, {vr(vMASK)}, {vr(W1F + 4 * j + d)}")
        a("s_waitcnt lgkmcnt(0)")
        for j in range(6):
            for d in range(4):
                a(f"v_pk_fma_f32 {P(U(j) + 2 * d)}, {P(ACC + 8 * j + 2 * d)}, {P(G + 8 * j + 2 * d)}, {P(U(j) + 2 * d)}")
            for d in range(4):
                a(f"v_cvt_pk_bf16_f32 {vr(W2F + 4 * j + d)}, {vr(U(j) + 2 * d)}, {vr(U(j) + 2 * d + 1)}")
            a(f"ds_write_b128 {vr(vLN if j & 1 else vSW)}, {vr(W2F + 4 * j, 4)} offset:{64 * (j >> 1)}")
        a("s_waitcnt lgkmcnt(0)")
        for i in range(6):
            a(f"ds_read_b128 {vr(W1F + 4 * i, 4)}, {vr(vSR)} offset:{1024 * i}")
        for i in range(6):
            a(f"s_waitcnt lgkmcnt({5 - i})",
              f"buffer_store_dwordx4 {vr(W1F + 4 * i, 4)}, {vr(vST + i)}, {sr(sOUT, 4)}, 0 offen {o['stpol']}")

    def dump_stamps(self, tag):
        if not self.o["stamps"]:
            return
        a = self.a
        a("s_waitcnt vmcnt(0)")
        self.stamp()
        a("s_load_dwordx2 s[4:5], s[0:1], 72", "s_waitcnt lgkmcnt(0)")
        srd(a, sDW, 4, 1 << 20)
        a(f"s_lshl_b32 {sr(sT)}, s2, 3", f"s_add_u32 {sr(sT)}, {sr(sT)}, {sr(sW)}", f"s_lshl_b32 {sr(sT)}, {sr(sT)}, 6",
          f"v_mov_b32 v4, {sr(sT)}", "s_mov_b64 exec, 1")
        for i in range(self.nstamp):
            if i:
                a(f"s_sub_u32 {sr(sT + 1)}, {sr(sSTAMP + 2 * i)}, {sr(sSTAMP)}", f"v_mov_b32 v5, {sr(sT + 1)}")
            else:
                a(f"v_mov_b32 v5, {sr(sSTAMP)}")
            a(f"buffer_store_dword v5, v4, {sr(sDW, 4)}, 0 offen offset:{4 * i}", "s_nop 1")

    def build(self):
        a = self.a
        self.prologue()
        self.conv()
        self.stamp()
        a(f"s_cmp_eq_u32 {sr(sW)}, 7", "s_cbranch_scc1 L_idle")
        self.ln_reads()
        a(f"s_cmp_ge_u32 {sr(sW)}, 4", "s_cbranch_scc1 L_role_b")
        n0 = self.nstamp
        for role in "ab":
            self.nstamp = n0
            if role == "b":
                a("L_role_b:")
                self.ln_math()
                self.dma2()
            else:
                self.dma2()
                self.ln_math()
            self.stamp()
            self.mlp(role)
            self.stamp()
            if role == "a":
                a("s_branch L_epi")
        a("L_epi:", "s_nop 7")
        self.epilogue()
        self.dump_stamps("m")
        a("s_endpgm")
        a("L_idle:", "s_barrier")
        self.dma2()
        a("s_waitcnt vmcnt(0)", "s_barrier", "L_end:", "s_endpgm")
        probs = check_hazards(a.lines)
        for p in probs:
            print("HAZARD", p, file=sys.stderr)
        head = open("standalone__modern_conv_block_convnext__vision.s.ref").read().split("; Override")[0]
        return (head + f"; @launch grid=(256,1,1) block=(512,1,1) lds={LDS_BYTES}\n"
                '.amdgcn_target "amdgcn-amd-amdhsa--gfx950"\n.text\n'
                f".globl {NAME}\n.p2align 8\n.type {NAME},@function\n{NAME}:\n" + a.text() +
                f'.section .rodata,"a"\n.p2align 6\n.amdhsa_kernel {NAME}\n'
                f"  .amdhsa_next_free_vgpr {NV}\n  .amdhsa_next_free_sgpr 102\n  .amdhsa_accum_offset {NV}\n"
                "  .amdhsa_group_segment_fixed_size 0\n  .amdhsa_kernarg_size 80\n  .amdhsa_user_sgpr_count 2\n"
                "  .amdhsa_user_sgpr_kernarg_segment_ptr 1\n  .amdhsa_system_sgpr_workgroup_id_x 1\n"
                ".end_amdhsa_kernel\n")


if __name__ == "__main__":
    assert all((q * 4682) >> 16 == q // 14 for q in range(256))
    assert all((q * 147) >> 10 == q // 7 for q in range(128))
    assert all((q * 43) >> 10 == q // 24 for q in range(80))
    out = sys.argv[1]
    opts = eval("dict(" + (sys.argv[2] if len(sys.argv) > 2 else "") + ")")
    open(out, "w").write(Gen(**opts).build())
```
